```python
import torch

def _softmax(x, axis=-1):
    return torch.softmax(x, dim=axis)
def _gelu(x):
    return torch.nn.functional.gelu(x, approximate="tanh")
def _silu(x):
    return torch.nn.functional.silu(x)
def _sigmoid(x):
    return torch.sigmoid(x)
def _layernorm(x, axis=-1, eps=1e-5):
    m = x.mean(dim=axis, keepdim=True)
    v = x.var(dim=axis, keepdim=True, unbiased=False)
    return (x - m) / torch.sqrt(v + eps)
def _scatter_add(tgt, idx, src, axis=0):
    return tgt.clone().index_add_(axis, idx, src)
def _segment_sum(src, seg, n):
    out = torch.zeros((n,) + src.shape[1:], dtype=src.dtype)
    return out.index_add_(0, seg, src)
def _pad(x, pw):
    flat = tuple(v for pair in reversed(pw) for v in pair)
    return torch.nn.functional.pad(x, flat)

kernel_name = 'recurrent_scan__mha_block_cached__dense_activation_gelu__decode'

def setup_inputs():

    _w = (lambda a: (lambda t: t.to(torch.bfloat16) if t.is_floating_point() else t)(torch.as_tensor(a)))
    def _A_setup():
        B, Sq, D = 8, 1, 640
        H, Sk, Dh = 32, 4096, 128
        return {
            "x": _w((lambda *s: torch.randn(*s, dtype=torch.bfloat16) * 0.1)(B, Sq, D)),
            "k_cache": _w((lambda *s: torch.randn(*s, dtype=torch.bfloat16) * 0.8)(B, H, Sk, Dh)),
            "v_cache": _w((lambda *s: torch.randn(*s, dtype=torch.bfloat16) * 3.2)(B, H, Sk, Dh)),
            "wq": _w((lambda *s: torch.randn(*s, dtype=torch.bfloat16) * 0.8)(D, H * Dh) * (D ** -0.5)),
            "wo": _w((lambda *s: torch.randn(*s, dtype=torch.bfloat16) * 3.2)(H * Dh, D) * ((H * Dh) ** -0.5)),
        }
    _A_in = _A_setup()

    def _B_setup():
        B, S, D, F = 8, 1, 640, 1728
        return {
            "x": _w((lambda *s: torch.randn(*s, dtype=torch.bfloat16) * 0.1)(B, S, D)),
            "w1": _w((lambda *s: torch.randn(*s, dtype=torch.bfloat16) * 3.2)(D, F) * (D ** -0.5)),
            "b1": _w((lambda *s: torch.randn(*s, dtype=torch.bfloat16) * 3.2)(F) * 0.01),
            "w2": _w((lambda *s: torch.randn(*s, dtype=torch.bfloat16) * 3.2)(F, D) * (F ** -0.5)),
            "b2": _w((lambda *s: torch.randn(*s, dtype=torch.bfloat16) * 3.2)(D) * 0.01),
        }
    _B_in = _B_setup()

    return {
        "A_x": _A_in["x"],
        "A_k_cache": _A_in["k_cache"],
        "A_v_cache": _A_in["v_cache"],
        "A_wq": _A_in["wq"],
        "A_wo": _A_in["wo"],
        "B_x": _B_in["x"],
        "B_w1": _B_in["w1"],
        "B_b1": _B_in["b1"],
        "B_w2": _B_in["w2"],
        "B_b2": _B_in["b2"],
    }

def reference(A_x, A_k_cache, A_v_cache, A_wq, A_wo, B_x, B_w1, B_b1, B_w2, B_b2):
    def _A_ref(x, k_cache, v_cache, wq, wo):
        B, Sq, D = x.shape
        H, Dh = 32, 128
        q = (lambda x, *d: x.permute(*d))((x @ wq).reshape(B, Sq, H, Dh), 0, 2, 1, 3)
        scores = torch.einsum("bhqd,bhkd->bhqk", q, k_cache) * (Dh ** -0.5)
        p = _softmax(scores, axis=-1)
        o = torch.einsum("bhqk,bhkd->bhqd", p, v_cache)
        return (lambda x, *d: x.permute(*d))(o, 0, 2, 1, 3).reshape(B, Sq, H * Dh) @ wo

    def _B_ref(x, w1, b1, w2, b2):
        h = torch.einsum("bsd,df->bsf", x, w1) + b1
        h = _gelu(h)
        return torch.einsum("bsf,fd->bsd", h, w2) + b2

    x = A_x
    xn = _layernorm(x, axis=-1)
    s = _A_ref(xn, A_k_cache, A_v_cache, A_wq, A_wo)
    g = _silu(_B_ref(xn, B_w1, B_b1, B_w2, B_b2))
    return x + s * g
```

```python
import sys

NAME = "recurrent_scan__mha_block_cached__dense_activation_gelu__decode"

CFG = dict(
    kv_nt=False,
    interleave=False,
    touch_iter=12,
)
for a in sys.argv[2:]:
    k, v = a.split("=")
    CFG[k] = type(CFG[k])(int(v)) if not isinstance(CFG[k], bool) else bool(int(v))

NFFN = 14
NATT = 256

LDS_XN = 0
LDS_HP = 20480
LDS_QP = 20480
LDS_QF = 24576
LDS_O = 25088
LDS_ML = 29184
LDS_Y = 29696
LDS_H = 53248
LDS_Z = 57344
LDS_TOTAL = 81920

WS_Y = 0
WS_Z = 256 * 2560

out = []


def e(s):
    out.append("    " + s)


def lab(s):
    out.append(s + ":")


def c(s):
    out.append("    ; " + s)


def vr(a, n=None):
    if n is None:
        return f"v{a}"
    return f"v[{a}:{a+n-1}]"


import struct


def fx(x):
    return "0x%08x" % struct.unpack("<I", struct.pack("<f", x))[0]


def mfma(d, a, b, cc):
    cs = "0" if cc is None else vr(cc, 4)
    e(f"v_mfma_f32_16x16x32_bf16 {vr(d,4)}, {vr(a,4)}, {vr(b,4)}, {cs}")


def allreduce(v, t, op):
    ins = f"v_{op}_f32"
    e("s_nop 1")
    for perm in ["quad_perm:[1,0,3,2]", "quad_perm:[2,3,0,1]", "row_half_mirror", "row_mirror"]:
        e(f"{ins}_dpp {vr(v)}, {vr(v)}, {vr(v)} {perm} row_mask:0xf bank_mask:0xf")
        e("s_nop 1")
    xgroup(v, t, op)


def xgroup(v, t, op):
    ins = f"v_{op}_f32"
    e(f"v_mov_b32 {vr(t)}, {vr(v)}")
    e("s_nop 1")
    e(f"v_permlane16_swap_b32 {vr(v)}, {vr(t)}")
    e("s_nop 0")
    e(f"{ins} {vr(v)}, {vr(v)}, {vr(t)}")
    e(f"v_mov_b32 {vr(t)}, {vr(v)}")
    e("s_nop 1")
    e(f"v_permlane32_swap_b32 {vr(v)}, {vr(t)}")
    e("s_nop 0")
    e(f"{ins} {vr(v)}, {vr(v)}, {vr(t)}")


def bf16r(d, s):
    e(f"v_cvt_pk_bf16_f32 {vr(d)}, {vr(s)}, {vr(s)}")
    e(f"v_and_b32 {vr(d)}, 0xffff0000, {vr(d)}")


def srd(base, plo, phi, nbytes, add=None):
    if add is None:
        e(f"s_mov_b32 s{base}, s{plo}")
        e(f"s_and_b32 s{base+1}, s{phi}, 0xffff")
    else:
        e(f"s_add_u32 s{base}, s{plo}, s{add}")
        e(f"s_addc_u32 s{base+1}, s{phi}, 0")
        e(f"s_and_b32 s{base+1}, s{base+1}, 0xffff")
    e(f"s_mov_b32 s{base+2}, {nbytes}")
    e(f"s_mov_b32 s{base+3}, 0x00020000")


S_X, S_K, S_V, S_WQ, S_WO, S_BX, S_W1, S_B1 = 4, 6, 8, 10, 12, 14, 16, 18
S_W2, S_B2, S_OUT, S_DBG, S_WS = 20, 22, 24, 26, 28
SRD_K, SRD_V, SRD_W, SRD_W2, SRD_X, SRD_O, SRD_B = 32, 36, 40, 44, 48, 52, 56
S_WAVE = 60
S_T0, S_T1, S_T2, S_T3 = 61, 62, 63, 64
S_C = 65
S_KOFF = 66
S_CNT = 67
S_B = 68
S_H = 69
S_EX = 70

V_TID, V_L, V_N, V_Q = 0, 1, 2, 3
V_VO0, V_VO1, V_KO0, V_KO1 = 4, 5, 6, 7
V_MK = 8
V_O = 12
V_QB = 16
V_KB = 32
V_VB = 64
V_S = 96
V_AT = 104
V_M, V_LS = 120, 121
T0, T1, T2, T3, T4, T5 = 122, 123, 124, 125, 126, 127

NT = " nt" if CFG["kv_nt"] else ""


def emit_masks():
    c("masks: m8 = l & 7 ; reg r = m8>>1 ; half = m8&1")
    e(f"v_and_b32 {vr(T0)}, 7, {vr(V_L)}")
    e(f"v_and_b32 {vr(T1)}, 1, {vr(V_L)}")
    e(f"v_cmp_eq_u32 vcc, 1, {vr(T1)}")
    e(f"v_mov_b32 {vr(T2)}, 0x0000ffff")
    e(f"v_mov_b32 {vr(T3)}, 0xffff0000")
    e("s_nop 1")
    e(f"v_cndmask_b32 {vr(T1)}, {vr(T2)}, {vr(T3)}, vcc")
    e(f"v_lshrrev_b32 {vr(T0)}, 1, {vr(T0)}")
    for r in range(4):
        e(f"v_cmp_eq_u32 vcc, {r}, {vr(T0)}")
        e("s_nop 1")
        e(f"v_cndmask_b32 {vr(V_MK+r)}, 0, {vr(T1)}, vcc")


def emit_ln(xr, row_lds_base_sgpr_or_const, tA, tB, tC, tD, vaddr):
    U = UNP
    for j in range(5):
        e(f"v_lshlrev_b32 {vr(U[2*j])}, 16, {vr(xr+j)}")
        e(f"v_and_b32 {vr(U[2*j+1])}, 0xffff0000, {vr(xr+j)}")
    e(f"v_add_f32 {vr(tA)}, {vr(U[0])}, {vr(U[1])}")
    for k in range(2, 10):
        e(f"v_add_f32 {vr(tA)}, {vr(tA)}, {vr(U[k])}")
    allreduce(tA, tB, "add")
    e(f"v_mul_f32 {vr(tA)}, {fx(1.0/640.0)}, {vr(tA)}")
    e(f"v_sub_f32 {vr(tC)}, {vr(U[0])}, {vr(tA)}")
    e(f"v_mul_f32 {vr(tB)}, {vr(tC)}, {vr(tC)}")
    for k in range(1, 10):
        e(f"v_sub_f32 {vr(tC)}, {vr(U[k])}, {vr(tA)}")
        e(f"v_fmac_f32 {vr(tB)}, {vr(tC)}, {vr(tC)}")
    allreduce(tB, tC, "add")
    e(f"v_mul_f32 {vr(tB)}, {fx(1.0/640.0)}, {vr(tB)}")
    bf16r(tA, tA)
    bf16r(tB, tB)
    e(f"v_add_f32 {vr(tB)}, {fx(1e-5)}, {vr(tB)}")
    bf16r(tB, tB)
    e(f"v_sqrt_f32 {vr(tB)}, {vr(tB)}")
    e("s_nop 0")
    bf16r(tB, tB)
    e(f"v_rcp_f32 {vr(tC)}, {vr(tB)}")
    e("s_nop 0")
    e(f"v_fma_f32 {vr(tD)}, -{vr(tB)}, {vr(tC)}, 2.0")
    e(f"v_mul_f32 {vr(tC)}, {vr(tC)}, {vr(tD)}")
    for k in range(10):
        e(f"v_sub_f32 {vr(U[k])}, {vr(U[k])}, {vr(tA)}")
        bf16r(U[k], U[k])
        e(f"v_mul_f32 {vr(U[k])}, {vr(U[k])}, {vr(tC)}")
        e(f"v_cvt_pk_bf16_f32 {vr(U[k])}, {vr(U[k])}, {vr(U[k])}")
    for j in range(5):
        e(f"ds_write_b64 {vr(vaddr)}, {vr(U[2*j],2)} offset:{j*512}")


def build_a(dst, src):
    for r in range(4):
        e(f"v_and_b32 {vr(dst+r)}, {vr(src)}, {vr(V_MK+r)}")


def k_loads():
    for T in range(2):
        for t in range(4):
            e(f"buffer_load_dwordx4 {vr(V_KB+(T*4+t)*4,4)}, {vr(V_KO0+T)}, s[{SRD_K}:{SRD_K+3}], s{S_KOFF} offen offset:{t*64}{NT}")


def v_loads():
    for T in range(2):
        for r in range(4):
            e(f"buffer_load_dwordx4 {vr(V_VB+(T*4+r)*4,4)}, {vr(V_VO0+T)}, s[{SRD_V}:{SRD_V+3}], s{S_KOFF} offen offset:{r*1024}{NT}")


BLK_STEP = 65536 if CFG["interleave"] else 8192

WO_REGS = [V_KB + 4 * i for i in range(8)] + [V_VB + 4 * i for i in range(8)] + [V_S, V_S + 4, V_AT, V_AT + 4]


def wo_load(idx):
    j, cg = idx // 5, idx % 5
    vo = T4 if j < 2 else T5
    off = (j % 2) * 1280 + cg * 256
    e(f"buffer_load_dwordx4 {vr(WO_REGS[idx],4)}, {vr(vo)}, s[{SRD_W2}:{SRD_W2+3}], s{S_T3} offen offset:{off}")


def attn_block(last=False, touch=False):
    e("s_waitcnt vmcnt(8)")
    for t in range(4):
        for T in range(2):
            mfma(V_S + T * 4, V_KB + (T * 4 + t) * 4, V_QB + t * 4, None if t == 0 else V_S + T * 4)
    if touch:
        c("touch wo slice lines (L2 prefetch): 20 KiB per wave = 160 lines of 128B")
        e(f"v_lshlrev_b32 {vr(T0)}, 7, {vr(V_L)}")
        for k in range(3):
            e(f"s_add_u32 s{S_T0}, s{S_T3}, {k*8192}")
            e(f"buffer_load_dword {vr(V_N)}, {vr(T0)}, s[{SRD_W2}:{SRD_W2+3}], s{S_T0} offen")
    if not last:
        e(f"s_add_u32 s{S_KOFF}, s{S_KOFF}, {BLK_STEP}")
        k_loads()
    else:
        for i in range(8):
            wo_load(i)
    S = [V_S + k for k in range(8)]
    c("block max")
    e(f"v_max3_f32 {vr(T0)}, {vr(S[0])}, {vr(S[1])}, {vr(S[2])}")
    e(f"v_max3_f32 {vr(T1)}, {vr(S[3])}, {vr(S[4])}, {vr(S[5])}")
    e(f"v_max3_f32 {vr(T0)}, {vr(S[6])}, {vr(S[7])}, {vr(T0)}")
    e(f"v_max_f32 {vr(T0)}, {vr(T0)}, {vr(T1)}")
    xgroup(T0, T1, "max")
    e(f"v_mul_f32 {vr(T0)}, s{S_C}, {vr(T0)}")
    e(f"v_max_f32 {vr(T0)}, {vr(V_M)}, {vr(T0)}")
    e(f"v_sub_f32 {vr(T1)}, {vr(V_M)}, {vr(T0)}")
    e(f"v_exp_f32 {vr(T1)}, {vr(T1)}")
    e(f"v_mov_b32 {vr(V_M)}, {vr(T0)}")
    for k in range(8):
        e(f"v_fma_f32 {vr(S[k])}, {vr(S[k])}, s{S_C}, -{vr(T0)}")
    for k in range(8):
        e(f"v_exp_f32 {vr(S[k])}, {vr(S[k])}")
    e(f"v_mul_f32 {vr(V_LS)}, {vr(V_LS)}, {vr(T1)}")
    for r in range(4):
        e(f"v_mul_f32 {vr(V_O+r)}, {vr(V_O+r)}, {vr(T1)}")
    e(f"v_add_f32 {vr(T2)}, {vr(S[0])}, {vr(S[1])}")
    e(f"v_add_f32 {vr(T3)}, {vr(S[2])}, {vr(S[3])}")
    e(f"v_add_f32 {vr(T2)}, {vr(T2)}, {vr(S[4])}")
    e(f"v_add_f32 {vr(T3)}, {vr(T3)}, {vr(S[5])}")
    e(f"v_add_f32 {vr(T2)}, {vr(T2)}, {vr(S[6])}")
    e(f"v_add_f32 {vr(T3)}, {vr(T3)}, {vr(S[7])}")
    e(f"v_add_f32 {vr(V_LS)}, {vr(V_LS)}, {vr(T2)}")
    e(f"v_add_f32 {vr(V_LS)}, {vr(V_LS)}, {vr(T3)}")
    for k in range(8):
        e(f"v_cvt_pk_bf16_f32 {vr(S[k])}, {vr(S[k])}, {vr(S[k])}")
    build_a(V_AT + 0, S[0])
    build_a(V_AT + 4, S[1])
    e("s_waitcnt vmcnt(8)")
    for k in range(8):
        if k + 2 < 8:
            build_a(V_AT + ((k + 2) % 4) * 4, S[k + 2])
        else:
            e("s_nop 1")
        mfma(V_O, V_AT + (k % 4) * 4, V_VB + k * 4, V_O)
    if not last:
        v_loads()


UNP = None


def gen_kernel_a():
    global UNP
    kn = "attn_ffn_kernel"
    out.append(f".globl {kn}")
    out.append(".p2align 8")
    out.append(f".type {kn},@function")
    lab(kn)
    e(f"s_cmp_ge_u32 s2, {NATT+NFFN}")
    e("s_cbranch_scc1 L_a_end")
    e("s_load_dwordx16 s[4:19], s[0:1], 0")
    e("s_load_dwordx8 s[20:27], s[0:1], 64")
    e("s_load_dwordx2 s[28:29], s[0:1], 96")
    e(f"v_and_b32 {vr(V_L)}, 63, {vr(V_TID)}")
    e(f"v_lshrrev_b32 {vr(T0)}, 6, {vr(V_TID)}")
    e(f"v_and_b32 {vr(V_N)}, 15, {vr(V_L)}")
    e(f"v_readfirstlane_b32 s{S_WAVE}, {vr(T0)}")
    e(f"v_lshrrev_b32 {vr(V_Q)}, 4, {vr(V_L)}")
    emit_masks()
    e(f"s_mov_b32 s{S_C}, {fx(0.08838834764831845*1.4426950408889634)}")
    e("s_waitcnt lgkmcnt(0)")
    srd(SRD_X, S_X, S_X + 1, 8 * 1280)
    e(f"s_cmp_ge_u32 s2, {NATT}")
    e("s_cbranch_scc1 L_ffn")

    c("attention workgroup: bh = s2")
    e(f"s_lshr_b32 s{S_B}, s2, 5")
    e(f"s_and_b32 s{S_H}, s2, 31")
    e(f"s_lshl_b32 s{S_T0}, s2, 20")
    srd(SRD_K, S_K, S_K + 1, 1 << 20, add=S_T0)
    srd(SRD_V, S_V, S_V + 1, 1 << 20, add=S_T0)
    srd(SRD_W, S_WQ, S_WQ + 1, 640 * 8192)
    e(f"s_mul_i32 s{S_T0}, s{S_H}, {128*1280}")
    srd(SRD_W2, S_WO, S_WO + 1, 128 * 1280, add=S_T0)
    e(f"s_mul_i32 s{S_T0}, s2, 2560")
    srd(SRD_O, S_WS, S_WS + 1, 2560, add=S_T0)
    c("x row loads: 5 dwords per lane")
    e(f"s_mul_i32 s{S_T0}, s{S_B}, 1280")
    e(f"v_lshlrev_b32 {vr(T0)}, 2, {vr(V_L)}")
    XR = V_AT + 8
    for j in range(5):
        e(f"buffer_load_dword {vr(XR+j)}, {vr(T0)}, s[{SRD_X}:{SRD_X+3}], s{S_T0} offen offset:{j*256}")
    c("wq loads: lane (n,q): row c = w*80 + q*20 + g, col h*128 + n*8")
    e(f"v_mul_u32_u24 {vr(T1)}, {20*8192}, {vr(V_Q)}")
    e(f"v_lshl_add_u32 {vr(T1)}, {vr(V_N)}, 4, {vr(T1)}")
    e(f"s_mul_i32 s{S_T1}, s{S_WAVE}, {80*8192}")
    e(f"s_lshl_b32 s{S_T2}, s{S_H}, 8")
    e(f"s_add_u32 s{S_T1}, s{S_T1}, s{S_T2}")
    WQR = [V_QB, V_QB + 4, V_QB + 8, V_QB + 12, V_S, V_S + 4, V_AT, V_AT + 4] + [V_VB + 4 * i for i in range(8)]
    c("touch rows g=16..19 (32 lines); dest reg is overwritten by a later real load")
    e(f"v_bfe_u32 {vr(T2)}, {vr(V_L)}, 2, 2")
    e(f"v_mul_u32_u24 {vr(T2)}, {20*8192}, {vr(T2)}")
    e(f"v_lshl_add_u32 {vr(T2)}, {vr(V_Q)}, 13, {vr(T2)}")
    e(f"v_and_b32 {vr(T3)}, 1, {vr(V_L)}")
    e(f"v_lshl_add_u32 {vr(T2)}, {vr(T3)}, 7, {vr(T2)}")
    e(f"s_add_u32 s{S_T2}, s{S_T1}, {16*8192}")
    e(f"buffer_load_dword {vr(WQR[15])}, {vr(T2)}, s[{SRD_W}:{SRD_W+3}], s{S_T2} offen")
    for g in range(16):
        e(f"buffer_load_dwordx4 {vr(WQR[g],4)}, {vr(T1)}, s[{SRD_W}:{SRD_W+3}], s{S_T1} offen")
        e(f"s_add_u32 s{S_T1}, s{S_T1}, 8192")
    c("K/V offsets")
    e(f"v_lshlrev_b32 {vr(V_VO0)}, 4, {vr(V_L)}")
    e(f"v_add_u32 {vr(V_VO1)}, 4096, {vr(V_VO0)}")
    e(f"v_and_b32 {vr(T2)}, 3, {vr(V_N)}")
    e(f"v_lshrrev_b32 {vr(T4)}, 2, {vr(V_N)}")
    e(f"v_lshl_add_u32 {vr(T2)}, {vr(T2)}, 2, {vr(T4)}")
    e(f"v_lshlrev_b32 {vr(T2)}, 8, {vr(T2)}")
    e(f"v_lshl_add_u32 {vr(V_KO0)}, {vr(V_Q)}, 4, {vr(T2)}")
    e(f"v_add_u32 {vr(V_KO1)}, 4096, {vr(V_KO0)}")
    if CFG["interleave"]:
        e(f"s_lshl_b32 s{S_KOFF}, s{S_WAVE}, 13")
    else:
        e(f"s_lshl_b32 s{S_KOFF}, s{S_WAVE}, 17")
    k_loads()
    e("s_waitcnt vmcnt(25)")
    c("layernorm (each wave redundantly), write xn to LDS")
    UNP = [V_O, V_O + 1, V_O + 2, V_O + 3, V_M, V_LS, V_AT + 14, V_AT + 15, T4, T5]
    e(f"v_lshlrev_b32 {vr(T0)}, 3, {vr(V_L)}")
    emit_ln(XR, 0, T2, T3, V_AT + 13, XR, T0)
    e("s_waitcnt lgkmcnt(0)")
    c("q projection")
    e(f"v_mul_u32_u24 {vr(T0)}, 80, {vr(V_Q)}")
    e(f"s_mul_i32 s{S_T2}, s{S_WAVE}, 320")
    e(f"v_add_u32 {vr(T0)}, s{S_T2}, {vr(T0)}")
    XC = V_AT + 8
    AQ = V_AT + 12
    e("s_waitcnt vmcnt(8)")
    for k in range(5):
        e(f"ds_read_b128 {vr(XC,4)}, {vr(T0)} offset:{LDS_XN + k*16}")
        if k == 4:
            e("s_waitcnt vmcnt(8)")
        e("s_waitcnt lgkmcnt(0)")
        for gg in range(4):
            g = k * 4 + gg
            build_a(AQ, XC + gg)
            e("s_nop 1")
            src = WQR[g] if g < 16 else WQR[g - 16]
            mfma(V_O, AQ, src, None if g == 0 else V_O)
        if k == 0:
            c("issue wq g=16..19 into regs of g=0..3")
            for gg in range(4):
                e(f"buffer_load_dwordx4 {vr(WQR[gg],4)}, {vr(T1)}, s[{SRD_W}:{SRD_W+3}], s{S_T1} offen")
                e(f"s_add_u32 s{S_T1}, s{S_T1}, 8192")
        if k == 3:
            c("V(0) prefetch")
            v_loads()
    c("write q partial to LDS")
    e(f"v_and_b32 {vr(T0)}, 1, {vr(V_Q)}")
    e(f"v_lshlrev_b32 {vr(T0)}, 4, {vr(T0)}")
    e(f"v_lshl_add_u32 {vr(T0)}, {vr(V_N)}, 5, {vr(T0)}")
    e(f"s_lshl_b32 s{S_T2}, s{S_WAVE}, 9")
    e(f"v_add_u32 {vr(T5)}, s{S_T2}, {vr(T0)}")
    e("s_nop 4")
    e(f"ds_write_b128 {vr(T5)}, {vr(V_O,4)} offset:{LDS_QP}")
    e("s_waitcnt lgkmcnt(0)")
    e("s_barrier")
    c("reduce q partials: t = tid & 127")
    e(f"v_and_b32 {vr(T0)}, 127, {vr(V_TID)}")
    e(f"v_lshlrev_b32 {vr(T1)}, 2, {vr(T0)}")
    for w in range(8):
        e(f"ds_read_b32 {vr(V_S+w)}, {vr(T1)} offset:{LDS_QP + w*512}")
    e("s_waitcnt lgkmcnt(0)")
    e(f"v_add_f32 {vr(T2)}, {vr(V_S)}, {vr(V_S+1)}")
    for w in range(2, 8):
        e(f"v_add_f32 {vr(T2)}, {vr(T2)}, {vr(V_S+w)}")
    e(f"v_cvt_pk_bf16_f32 {vr(T2)}, {vr(T2)}, {vr(T2)}")
    e(f"v_lshlrev_b32 {vr(T1)}, 1, {vr(T0)}")
    e(f"ds_write_b16 {vr(T1)}, {vr(T2)} offset:{LDS_QF}")
    e("s_waitcnt lgkmcnt(0)")
    e("s_barrier")
    e(f"v_lshlrev_b32 {vr(T1)}, 4, {vr(V_Q)}")
    for t in range(4):
        e(f"ds_read_b128 {vr(V_QB+4*t,4)}, {vr(T1)} offset:{LDS_QF + t*64}")
    c("init running state")
    e(f"v_mov_b32 {vr(V_M)}, {fx(-1e30)}")
    e(f"v_mov_b32 {vr(V_LS)}, 0")
    for r in range(4):
        e(f"v_mov_b32 {vr(V_O+r)}, 0")
    c("wo offsets: voffset = q*5120 + n*16 (+2560), soffset = w*20480")
    e(f"v_mul_u32_u24 {vr(T4)}, 5120, {vr(V_Q)}")
    e(f"v_lshl_add_u32 {vr(T4)}, {vr(V_N)}, 4, {vr(T4)}")
    e(f"v_add_u32 {vr(T5)}, 2560, {vr(T4)}")
    e(f"s_mul_i32 s{S_T3}, s{S_WAVE}, 20480")
    e("s_waitcnt lgkmcnt(0)")
    nloop = CFG["touch_iter"]
    e(f"s_mov_b32 s{S_CNT}, {nloop}")
    lab("L_loop")
    attn_block()
    e(f"s_sub_u32 s{S_CNT}, s{S_CNT}, 1")
    e(f"s_cmp_lg_u32 s{S_CNT}, 0")
    e("s_cbranch_scc1 L_loop")
    for i in range(nloop, 16):
        attn_block(last=(i == 15), touch=(i == nloop))
    c("remaining wo loads")
    e("s_nop 1")
    for i in range(8, 20):
        wo_load(i)
    c("epilogue: reduce l across groups, write O/m/l to LDS")
    e(f"v_and_b32 {vr(V_N)}, 15, {vr(V_L)}")
    xgroup(V_LS, T0, "add")
    e(f"v_and_b32 {vr(T0)}, 1, {vr(V_Q)}")
    e(f"v_lshlrev_b32 {vr(T0)}, 4, {vr(T0)}")
    e(f"v_lshl_add_u32 {vr(T0)}, {vr(V_N)}, 5, {vr(T0)}")
    e(f"s_lshl_b32 s{S_T2}, s{S_WAVE}, 9")
    e(f"v_add_u32 {vr(T1)}, s{S_T2}, {vr(T0)}")
    e(f"ds_write_b128 {vr(T1)}, {vr(V_O,4)} offset:{LDS_O}")
    e(f"s_lshl_b32 s{S_T2}, s{S_WAVE}, 3")
    e(f"v_mov_b32 {vr(T1)}, s{S_T2}")
    e(f"ds_write_b64 {vr(T1)}, {vr(V_M,2)} offset:{LDS_ML}")
    e("s_waitcnt lgkmcnt(0)")
    e("s_barrier")
    e(f"v_mov_b32 {vr(T1)}, 0")
    for k in range(4):
        e(f"ds_read_b128 {vr(V_QB+4*k,4)}, {vr(T1)} offset:{LDS_ML + k*16}")
    e("s_waitcnt lgkmcnt(0)")
    ML = V_QB
    e(f"v_max3_f32 {vr(T0)}, {vr(ML)}, {vr(ML+2)}, {vr(ML+4)}")
    e(f"v_max3_f32 {vr(T0)}, {vr(T0)}, {vr(ML+6)}, {vr(ML+8)}")
    e(f"v_max3_f32 {vr(T0)}, {vr(T0)}, {vr(ML+10)}, {vr(ML+12)}")
    e(f"v_max_f32 {vr(T0)}, {vr(T0)}, {vr(ML+14)}")
    for w in range(8):
        e(f"v_sub_f32 {vr(ML+2*w)}, {vr(ML+2*w)}, {vr(T0)}")
    for w in range(8):
        e(f"v_exp_f32 {vr(ML+2*w)}, {vr(ML+2*w)}")
    e("s_nop 0")
    e(f"v_mul_f32 {vr(T1)}, {vr(ML)}, {vr(ML+1)}")
    for w in range(1, 8):
        e(f"v_fmac_f32 {vr(T1)}, {vr(ML+2*w)}, {vr(ML+2*w+1)}")
    e(f"v_rcp_f32 {vr(T2)}, {vr(T1)}")
    e("s_nop 0")
    e(f"v_fma_f32 {vr(T3)}, -{vr(T1)}, {vr(T2)}, 2.0")
    e(f"v_mul_f32 {vr(T2)}, {vr(T2)}, {vr(T3)}")
    for w in range(8):
        e(f"v_mul_f32 {vr(ML+2*w)}, {vr(ML+2*w)}, {vr(T2)}")
    e(f"s_lshl_b32 s{S_T2}, s{S_WAVE}, 6")
    e(f"v_lshlrev_b32 {vr(T1)}, 4, {vr(V_Q)}")
    e(f"v_add_u32 {vr(T1)}, s{S_T2}, {vr(T1)}")
    for w2 in range(4):
        e(f"ds_read_b128 {vr(V_AT+8,4)}, {vr(T1)} offset:{LDS_O + (2*w2)*512}")
        e(f"ds_read_b128 {vr(V_AT+12,4)}, {vr(T1)} offset:{LDS_O + (2*w2+1)*512}")
        e("s_waitcnt lgkmcnt(0)")
        for j in range(4):
            if w2 == 0:
                e(f"v_mul_f32 {vr(V_O+j)}, {vr(V_AT+8+j)}, {vr(ML+4*w2)}")
            else:
                e(f"v_fmac_f32 {vr(V_O+j)}, {vr(V_AT+8+j)}, {vr(ML+4*w2)}")
            e(f"v_fmac_f32 {vr(V_O+j)}, {vr(V_AT+12+j)}, {vr(ML+4*w2+2)}")
    for j in range(4):
        e(f"v_cvt_pk_bf16_f32 {vr(V_O+j)}, {vr(V_O+j)}, {vr(V_O+j)}")
    c("wo projection: acc Y[cg] in QB(16)+ (T0..T3?) -> need 20 regs: QB 16 + V_M..(120..123)")
    YR = [V_QB, V_QB + 4, V_QB + 8, V_QB + 12, V_M]
    e("s_waitcnt vmcnt(0)")
    for j in range(4):
        build_a(V_AT + 8 + (j % 2) * 4, V_O + j)
        e("s_nop 1")
        for cg in range(5):
            mfma(YR[cg], V_AT + 8 + (j % 2) * 4, WO_REGS[j * 5 + cg], None if j == 0 else YR[cg])
    c("write Y partial: LDS_Y + w*2560 + cg*512 + n*32 + (grp&1)*16")
    e(f"v_and_b32 {vr(T2)}, 1, {vr(V_Q)}")
    e(f"v_lshlrev_b32 {vr(T2)}, 4, {vr(T2)}")
    e(f"v_lshl_add_u32 {vr(T2)}, {vr(V_N)}, 5, {vr(T2)}")
    e(f"s_mul_i32 s{S_T2}, s{S_WAVE}, 2560")
    e(f"v_add_u32 {vr(T2)}, s{S_T2}, {vr(T2)}")
    e("s_nop 7")
    for cg in range(5):
        e(f"ds_write_b128 {vr(T2)}, {vr(YR[cg],4)} offset:{LDS_Y + cg*512}")
    e("s_waitcnt lgkmcnt(0)")
    e("s_barrier")
    e(f"v_cmp_gt_u32 vcc, 160, {vr(V_TID)}")
    e(f"s_and_saveexec_b64 s[{S_EX}:{S_EX+1}], vcc")
    e("s_cbranch_execz L_a_end")
    e(f"v_lshlrev_b32 {vr(T2)}, 4, {vr(V_TID)}")
    for w in range(8):
        e(f"ds_read_b128 {vr(V_KB+4*w,4)}, {vr(T2)} offset:{LDS_Y + w*2560}")
    e("s_waitcnt lgkmcnt(0)")
    for w in range(1, 8):
        for r in range(4):
            e(f"v_add_f32 {vr(V_KB+r)}, {vr(V_KB+r)}, {vr(V_KB+4*w+r)}")
    e(f"buffer_store_dwordx4 {vr(V_KB,4)}, {vr(T2)}, s[{SRD_O}:{SRD_O+3}], 0 offen")
    e("s_endpgm")

    lab("L_ffn")
    c("ffn workgroup: slice s = s2 - 256")
    S_S = S_B
    e(f"s_sub_u32 s{S_S}, s2, {NATT}")
    srd(SRD_W, S_W1, S_W1 + 1, 640 * 3456)
    srd(SRD_W2, S_W2, S_W2 + 1, 1728 * 1280)
    srd(SRD_B, S_B1, S_B1 + 1, 3456)
    e(f"s_mul_i32 s{S_T0}, s{S_S}, 20480")
    e(f"s_add_u32 s{S_T0}, s{S_T0}, {WS_Z}")
    srd(SRD_O, S_WS, S_WS + 1, 20480, add=S_T0)
    LR = [40 + 4 * i for i in range(20)]
    ACC = [16, 20, 24, 28]
    XCH = [32, 36, 12, 120]
    AQ = 124
    c("x row (row = wave) loads")
    e(f"s_mul_i32 s{S_T0}, s{S_WAVE}, 1280")
    e(f"v_lshlrev_b32 v4, 2, {vr(V_L)}")
    for j in range(5):
        e(f"buffer_load_dword v{16+j}, v4, s[{SRD_X}:{SRD_X+3}], s{S_T0} offen offset:{j*256}")
    c("w1 loads: row c = w*80+q*20+g, col s*128 + n*8")
    e(f"v_mul_u32_u24 v5, {20*3456}, {vr(V_Q)}")
    e(f"v_lshl_add_u32 v5, {vr(V_N)}, 4, v5")
    e(f"s_mul_i32 s{S_T1}, s{S_WAVE}, {80*3456}")
    e(f"s_lshl_b32 s{S_T2}, s{S_S}, 8")
    e(f"s_add_u32 s{S_T1}, s{S_T1}, s{S_T2}")
    for g in range(20):
        e(f"buffer_load_dwordx4 {vr(LR[g],4)}, v5, s[{SRD_W}:{SRD_W+3}], s{S_T1} offen")
        e(f"s_add_u32 s{S_T1}, s{S_T1}, 3456")
    c("zero Z accumulators in LDS")
    e(f"v_lshlrev_b32 v6, 4, {vr(V_TID)}")
    e(f"v_add_u32 v6, {LDS_Z}, v6")
    for r in range(4):
        e(f"v_mov_b32 v{32+r}, 0")
    for k in range(3):
        e(f"ds_write_b128 v6, v[32:35] offset:{k*8192}")
    e("s_waitcnt vmcnt(20)")
    UNP = [22, 23, 24, 25, 26, 27, 28, 29, 30, 31]
    e(f"s_mul_i32 s{S_T0}, s{S_WAVE}, 2560")
    e(f"v_lshlrev_b32 v6, 3, {vr(V_L)}")
    e(f"v_add_u32 v6, s{S_T0}, v6")
    emit_ln(16, 0, 32, 33, 34, 35, 6)
    e("s_waitcnt lgkmcnt(0)")
    e("s_barrier")
    c("stage 1")
    e(f"v_lshrrev_b32 v6, 3, {vr(V_N)}")
    e(f"v_mul_u32_u24 v6, 2560, v6")
    e(f"v_mul_u32_u24 v7, 80, {vr(V_Q)}")
    e(f"v_add_u32 v6, v6, v7")
    e(f"s_mul_i32 s{S_T0}, s{S_WAVE}, 320")
    e(f"v_add_u32 v6, s{S_T0}, v6")
    e("s_waitcnt vmcnt(0)")
    for k in range(5):
        for P in range(4):
            e(f"ds_read_b128 {vr(XCH[P],4)}, v6 offset:{LDS_XN + P*5120 + k*16}")
        e("s_waitcnt lgkmcnt(0)")
        for gg in range(4):
            g = k * 4 + gg
            for P in range(4):
                build_a(AQ, XCH[P] + gg)
                e("s_nop 1")
                mfma(ACC[P], AQ, LR[g], None if g == 0 else ACC[P])
    c("issue w2 loads now (regs free): row = s*128 + w*16 + q*4 + j")
    e(f"v_mul_u32_u24 v4, 5120, {vr(V_Q)}")
    e(f"v_lshl_add_u32 v4, {vr(V_N)}, 4, v4")
    e(f"v_add_u32 v5, 2560, v4")
    e(f"s_lshl_b32 s{S_T1}, s{S_S}, 7")
    e(f"s_lshl_b32 s{S_T2}, s{S_WAVE}, 4")
    e(f"s_add_u32 s{S_T1}, s{S_T1}, s{S_T2}")
    e(f"s_mul_i32 s{S_T1}, s{S_T1}, 1280")
    for cg in range(5):
        for j in range(4):
            e(f"buffer_load_dwordx4 {vr(LR[cg*4+j],4)}, v{4 if j<2 else 5}, s[{SRD_W2}:{SRD_W2+3}], s{S_T1} offen offset:{(j%2)*1280+cg*256}")
    c("write h partials: LDS_HP + w*4096 + (2P + grp/2)*512 + n*32 + (grp&1)*16")
    e(f"v_and_b32 v6, 1, {vr(V_Q)}")
    e(f"v_lshlrev_b32 v6, 4, v6")
    e(f"v_lshl_add_u32 v6, {vr(V_N)}, 5, v6")
    e(f"v_lshrrev_b32 v7, 1, {vr(V_Q)}")
    e(f"v_lshl_add_u32 v6, v7, 9, v6")
    e(f"s_lshl_b32 s{S_T0}, s{S_WAVE}, 12")
    e(f"v_add_u32 v7, s{S_T0}, v6")
    for P in range(4):
        e(f"ds_write_b128 v7, {vr(ACC[P],4)} offset:{LDS_HP + P*1024}")
    c("b1 load: dword at (s*128 + 2*(t&63))*2")
    e(f"v_lshlrev_b32 v12, 2, {vr(V_L)}")
    e(f"s_lshl_b32 s{S_T0}, s{S_S}, 8")
    e(f"buffer_load_dword v13, v12, s[{SRD_B}:{SRD_B+3}], s{S_T0} offen")
    e("s_waitcnt lgkmcnt(0)")
    e("s_barrier")
    c("reduce: thread (b = wave, units 2l, 2l+1)")
    e(f"s_lshl_b32 s{S_T0}, s{S_WAVE}, 9")
    e(f"v_lshlrev_b32 v7, 3, {vr(V_L)}")
    e(f"v_add_u32 v7, s{S_T0}, v7")
    for w in range(8):
        e(f"ds_read_b64 v[{16+2*w}:{17+2*w}], v7 offset:{LDS_HP + w*4096}")
    e("s_waitcnt lgkmcnt(0)")
    for w in range(1, 8):
        e(f"v_add_f32 v16, v16, v{16+2*w}")
        e(f"v_add_f32 v17, v17, v{17+2*w}")
    e("s_waitcnt vmcnt(0)")
    e("v_lshlrev_b32 v18, 16, v13")
    e("v_and_b32 v19, 0xffff0000, v13")
    for u in range(2):
        h = 16 + u
        bf16r(h, h)
        e(f"v_add_f32 v{h}, v{h}, v{18+u}")
        bf16r(h, h)
        e(f"v_mul_f32 v20, v{h}, v{h}")
        e(f"v_mul_f32 v20, {fx(0.044715)}, v20")
        e(f"v_add_f32 v20, 1.0, v20")
        e(f"v_mul_f32 v20, v20, v{h}")
        e(f"v_mul_f32 v20, {fx(-2.0*0.7978845608028654*1.4426950408889634)}, v20")
        e(f"v_exp_f32 v20, v20")
        e("s_nop 0")
        e(f"v_add_f32 v20, 1.0, v20")
        e(f"v_rcp_f32 v20, v20")
        e("s_nop 0")
        e(f"v_mul_f32 v{h}, v{h}, v20")
        e(f"v_cvt_pk_bf16_f32 v{h}, v{h}, v{h}")
    c("zero invalid units: s*128 + 2l >= 1728")
    e(f"s_lshl_b32 s{S_T0}, s{S_S}, 7")
    e(f"v_lshlrev_b32 v20, 1, {vr(V_L)}")
    e(f"v_add_u32 v20, s{S_T0}, v20")
    e(f"v_cmp_gt_u32 vcc, 1728, v20")
    e("s_nop 1")
    e(f"v_cndmask_b32 v16, 0, v16, vcc")
    e(f"v_cndmask_b32 v17, 0, v17, vcc")
    e(f"ds_write_b64 v7, v[16:17] offset:{LDS_H}")
    e("s_waitcnt lgkmcnt(0)")
    e("s_barrier")
    c("stage 2: h read: (2P + m/8)*512 + (w*16 + q*4)*4")
    e(f"v_lshrrev_b32 v7, 3, {vr(V_N)}")
    e(f"v_lshlrev_b32 v7, 9, v7")
    e(f"v_lshl_add_u32 v7, {vr(V_Q)}, 4, v7")
    e(f"s_lshl_b32 s{S_T0}, s{S_WAVE}, 6")
    e(f"v_add_u32 v7, s{S_T0}, v7")
    for P in range(4):
        e(f"ds_read_b128 {vr(XCH[P],4)}, v7 offset:{LDS_H + P*1024}")
    c("z add address: (2P + grp/2)*2560 + (cg*128 + n*8 + (grp&1)*4 + r)*4")
    e(f"v_lshrrev_b32 v7, 1, {vr(V_Q)}")
    e(f"v_mul_u32_u24 v7, 2560, v7")
    e(f"v_and_b32 v6, 1, {vr(V_Q)}")
    e(f"v_lshl_add_u32 v7, v6, 4, v7")
    e(f"v_lshl_add_u32 v7, {vr(V_N)}, 5, v7")
    e(f"v_add_u32 v7, {LDS_Z}, v7")
    e("s_waitcnt lgkmcnt(0)")
    for cg in range(5):
        for j in range(4):
            for P in range(4):
                build_a(AQ, XCH[P] + j)
                e("s_nop 1")
                mfma(ACC[P], AQ, LR[cg * 4 + j], None if j == 0 else ACC[P])
        e("s_nop 7")
        e("s_nop 1")
        for P in range(4):
            for r in range(4):
                e(f"ds_add_f32 v7, v{ACC[P]+r} offset:{P*5120 + cg*512 + r*4}")
        e("s_waitcnt lgkmcnt(0)")
    e("s_barrier")
    c("write z")
    e(f"v_lshlrev_b32 v6, 4, {vr(V_TID)}")
    e(f"v_add_u32 v7, {LDS_Z}, v6")
    for k in range(3):
        e(f"ds_read_b128 v[{16+4*k}:{19+4*k}], v7 offset:{k*8192}")
    e("s_waitcnt lgkmcnt(0)")
    for k in range(3):
        e(f"buffer_store_dwordx4 v[{16+4*k}:{19+4*k}], v6, s[{SRD_O}:{SRD_O+3}], 0 offen offset:0" if k == 0 else
          f"v_add_u32 v7, {k*8192}, v6")
        if k > 0:
            e(f"buffer_store_dwordx4 v[{16+4*k}:{19+4*k}], v7, s[{SRD_O}:{SRD_O+3}], 0 offen")
            e("s_nop 1")
    lab("L_a_end")
    e("s_endpgm")


def gen_kernel_b():
    kn = "final_kernel"
    out.append(f".globl {kn}")
    out.append(".p2align 8")
    out.append(f".type {kn},@function")
    lab(kn)
    e("s_cmp_ge_u32 s2, 20")
    e("s_cbranch_scc1 L_b_end")
    e("s_load_dwordx16 s[4:19], s[0:1], 0")
    e("s_load_dwordx8 s[20:27], s[0:1], 64")
    e("s_load_dwordx2 s[28:29], s[0:1], 96")
    e("s_lshl_b32 s3, s2, 8")
    e("v_add_u32 v1, s3, v0")
    e(f"s_mov_b32 s60, {(1<<32)//640 + 1}")
    e("v_mul_hi_u32 v2, v1, s60")
    e("v_mul_u32_u24 v3, 640, v2")
    e("v_sub_u32 v3, v1, v3")
    e("s_waitcnt lgkmcnt(0)")
    srd(32, S_WS, S_WS + 1, WS_Z + 14 * 20480)
    srd(36, S_X, S_X + 1, 8 * 1280)
    srd(40, S_B2, S_B2 + 1, 1280)
    srd(44, S_OUT, S_OUT + 1, 8 * 1280)
    e("v_mul_u32_u24 v4, 81920, v2")
    e("v_lshl_add_u32 v4, v3, 2, v4")
    e("s_mov_b32 s61, 0")
    for h in range(32):
        e(f"buffer_load_dword v{16+h}, v4, s[32:35], s61 offen")
        e("s_add_u32 s61, s61, 2560")
    e("v_mul_u32_u24 v5, 2560, v2")
    e("v_lshl_add_u32 v5, v3, 2, v5")
    e(f"s_mov_b32 s61, {WS_Z}")
    for s in range(14):
        e(f"buffer_load_dword v{48+s}, v5, s[32:35], s61 offen")
        e("s_add_u32 s61, s61, 20480")
    e("v_lshlrev_b32 v6, 1, v1")
    e("buffer_load_ushort v62, v6, s[36:39], 0 offen")
    e("v_lshlrev_b32 v7, 1, v3")
    e("buffer_load_ushort v63, v7, s[40:43], 0 offen")
    e("s_waitcnt vmcnt(16)")
    for h in range(1, 32):
        e(f"v_add_f32 v16, v16, v{16+h}")
    e("s_waitcnt vmcnt(0)")
    for s in range(1, 14):
        e(f"v_add_f32 v48, v48, v{48+s}")
    bf16r(16, 16)
    bf16r(48, 48)
    e("v_lshlrev_b32 v63, 16, v63")
    e("v_lshlrev_b32 v62, 16, v62")
    e("v_add_f32 v48, v48, v63")
    bf16r(48, 48)
    e(f"v_mul_f32 v49, {fx(-1.4426950408889634)}, v48")
    e("v_exp_f32 v49, v49")
    e("s_nop 0")
    e("v_add_f32 v49, 1.0, v49")
    e("v_rcp_f32 v50, v49")
    e("s_nop 0")
    e("v_fma_f32 v51, -v49, v50, 2.0")
    e("v_mul_f32 v50, v50, v51")
    e("v_mul_f32 v48, v48, v50")
    bf16r(48, 48)
    e("v_mul_f32 v16, v16, v48")
    bf16r(16, 16)
    e("v_add_f32 v16, v16, v62")
    e("v_cvt_pk_bf16_f32 v16, v16, v16")
    e("buffer_store_short v16, v6, s[44:47], 0 offen")
    lab("L_b_end")
    e("s_endpgm")


def kd(kn, vgpr, sgpr):
    out.append(f".amdhsa_kernel {kn}")
    out.append(f"  .amdhsa_next_free_vgpr {vgpr}")
    out.append(f"  .amdhsa_next_free_sgpr {sgpr}")
    out.append(f"  .amdhsa_accum_offset {(vgpr+3)//4*4}")
    out.append("  .amdhsa_group_segment_fixed_size 0")
    out.append("  .amdhsa_kernarg_size 104")
    out.append("  .amdhsa_user_sgpr_count 2")
    out.append("  .amdhsa_user_sgpr_kernarg_segment_ptr 1")
    out.append("  .amdhsa_system_sgpr_workgroup_id_x 1")
    out.append("  .amdhsa_float_denorm_mode_32 3")
    out.append(".end_amdhsa_kernel")


def main():
    out.append("; Fused decode attention (layernorm + q-proj + flash-decode + out-proj) and FFN, then final combine.")
    out.append(f"; @launch kernel=attn_ffn_kernel grid=({NATT+NFFN},1,1) block=(512,1,1) lds={LDS_TOTAL}")
    out.append("; @launch kernel=final_kernel grid=(20,1,1) block=(256,1,1) lds=0")
    out.append('.amdgcn_target "amdgcn-amd-amdhsa--gfx950"')
    out.append(".text")
    gen_kernel_a()
    gen_kernel_b()
    out.append('.section .rodata,"a"')
    out.append(".p2align 6")
    kd("attn_ffn_kernel", 128, 80)
    out.append(".p2align 6")
    kd("final_kernel", 64, 72)
    path = sys.argv[1] if len(sys.argv) > 1 else f"cdna_kernels/{NAME}.s"
    open(path, "w").write("\n".join(out) + "\n")


main()
```
